```python
import torch

def _softmax(x, axis=-1):
    return torch.softmax(x, dim=axis)
def _gelu(x):
    return torch.nn.functional.gelu(x, approximate="tanh")
def _silu(x):
    return torch.nn.functional.silu(x)
def _sigmoid(x):
    return torch.sigmoid(x)
def _layernorm(x, axis=-1, eps=1e-5):
    m = x.mean(dim=axis, keepdim=True)
    v = x.var(dim=axis, keepdim=True, unbiased=False)
    return (x - m) / torch.sqrt(v + eps)
def _scatter_add(tgt, idx, src, axis=0):
    return tgt.clone().index_add_(axis, idx, src)
def _segment_sum(src, seg, n):
    out = torch.zeros((n,) + src.shape[1:], dtype=src.dtype)
    return out.index_add_(0, seg, src)
def _pad(x, pw):
    flat = tuple(v for pair in reversed(pw) for v in pair)
    return torch.nn.functional.pad(x, flat)

kernel_name = 'concat_heads__ssm_conv_s5__grouped_kv_mqa__prompt'

def setup_inputs():

    _w = (lambda a: (lambda t: t.to(torch.bfloat16) if t.is_floating_point() else t)(torch.as_tensor(a)))
    def _A_setup():
        B, S, D = 1, 2048, 576
        P = D
        Lambda_re = -0.5 * (lambda _x: torch.exp(torch.as_tensor(_x)))((lambda *s: torch.randn(*s, dtype=torch.bfloat16) * 0.2)(P))
        Lambda_im = (lambda *s: torch.randn(*s, dtype=torch.bfloat16) * 0.4)(P) * 1.0
        B_re = (lambda *s: torch.randn(*s, dtype=torch.bfloat16) * 0.2)(P, D) * (D ** -0.5)
        B_im = (lambda *s: torch.randn(*s, dtype=torch.bfloat16) * 0.2)(P, D) * (D ** -0.5)
        C_re = (lambda *s: torch.randn(*s, dtype=torch.bfloat16) * 0.2)(D, P) * (P ** -0.5)
        C_im = (lambda *s: torch.randn(*s, dtype=torch.bfloat16) * 0.2)(D, P) * (P ** -0.5)
        log_dt = (lambda *s: torch.randn(*s, dtype=torch.bfloat16) * 0.2)(P) * 0.3 - 2.0
        Dskip = (lambda *s: torch.randn(*s, dtype=torch.bfloat16) * 0.05)(D)
        return {
            "x": _w((lambda *s: torch.randn(*s, dtype=torch.bfloat16) * 0.05)(B, S, D)),
            "Lambda_re": _w(Lambda_re),
            "Lambda_im": _w(Lambda_im),
            "B_re": _w(B_re),
            "B_im": _w(B_im),
            "C_re": _w(C_re),
            "C_im": _w(C_im),
            "log_dt": _w(log_dt),
            "Dskip": _w(Dskip),
        }
    _A_in = _A_setup()

    def _B_setup():
        B, S, D, H = 1, 2048, 576, 32
        Dh = D // H
        return {
            "x": _w((lambda *s: torch.randn(*s, dtype=torch.bfloat16) * 0.05)(B, S, D)),
            "wq": _w((lambda *s: torch.randn(*s, dtype=torch.bfloat16) * 0.8)(D, H * Dh)),
            "wk": _w((lambda *s: torch.randn(*s, dtype=torch.bfloat16) * 0.8)(D, Dh)),
            "wv": _w((lambda *s: torch.randn(*s, dtype=torch.bfloat16) * 0.05)(D, Dh)),
            "wo": _w((lambda *s: torch.randn(*s, dtype=torch.bfloat16) * 0.05)(H * Dh, D)),
        }
    _B_in = _B_setup()

    return {
        "A_x": _A_in["x"],
        "A_Lambda_re": _A_in["Lambda_re"],
        "A_Lambda_im": _A_in["Lambda_im"],
        "A_B_re": _A_in["B_re"],
        "A_B_im": _A_in["B_im"],
        "A_C_re": _A_in["C_re"],
        "A_C_im": _A_in["C_im"],
        "A_log_dt": _A_in["log_dt"],
        "A_Dskip": _A_in["Dskip"],
        "B_x": _B_in["x"],
        "B_wq": _B_in["wq"],
        "B_wk": _B_in["wk"],
        "B_wv": _B_in["wv"],
        "B_wo": _B_in["wo"],
    }

def reference(A_x, A_Lambda_re, A_Lambda_im, A_B_re, A_B_im, A_C_re, A_C_im, A_log_dt, A_Dskip, B_x, B_wq, B_wk, B_wv, B_wo):
    def _A_ref(x, Lambda_re, Lambda_im, B_re, B_im, C_re, C_im, log_dt, Dskip):
        Bsz, L, H = x.shape
        Lam = Lambda_re + 1j * Lambda_im
        Bmat = B_re + 1j * B_im
        Cmat = C_re + 1j * C_im
        dt = torch.exp(log_dt)
        Lam_bar = torch.exp(dt * Lam)
        B_bar = ((Lam_bar - 1.0) / Lam)[:, None] * Bmat
        Bu = torch.einsum("bld,pd->blp", x + 0j, B_bar)
        h = torch.zeros_like(Bu[:, 0, :])
        hs = []
        for t in range(L):
            h = Lam_bar[None, :] * h + Bu[:, t, :]
            hs.append(h)
        hseq = torch.stack(hs, 1)
        y = 2.0 * torch.einsum("blp,dp->bld", hseq, Cmat).real + x * Dskip[None, None, :]
        return y

    def _B_ref(x, wq, wk, wv, wo):
        B, S, D = x.shape
        H = 32
        Dh = D // H
        q = (lambda x, *d: x.permute(*d))((x @ wq).reshape(B, S, H, Dh), 0, 2, 1, 3)
        k = x @ wk
        v = x @ wv
        scores = torch.einsum("bhqd,bkd->bhqk", q, k) * (Dh ** -0.5)
        p = _softmax(scores, axis=-1)
        o = torch.einsum("bhqk,bkd->bhqd", p, v)
        return (lambda x, *d: x.permute(*d))(o, 0, 2, 1, 3).reshape(B, S, H * Dh) @ wo

    a = _A_ref(A_x, A_Lambda_re, A_Lambda_im, A_B_re, A_B_im, A_C_re, A_C_im, A_log_dt, A_Dskip)
    b = _B_ref(B_x, B_wq, B_wk, B_wv, B_wo)
    return torch.concatenate([a, b], axis=-1)
```

```python
from fw import *
import math
WS_Q  = 0x000000
WS_KV = 0x280000
WS_HT = 0x300000
WS_O  = 0x800000
WS_E  = 0xB00000
KV_TILE = 2496
P_AX, P_LRE, P_LIM, P_BRE, P_BIM, P_CRE, P_CIM, P_LDT = 16, 18, 20, 22, 24, 26, 28, 30
P_DSK, P_BX, P_WQ, P_WK, P_WV, P_WO, P_OUT, P_DBG, P_WS = 32, 34, 36, 38, 40, 42, 44, 46, 48
XB = 2048*576*2
WB = 576*576*2
S_CHUNK, S_JJ, S_W, S_T0, S_T1, S_T2, S_KO, S_M0A, S_M0B = 3, 4, 5, 6, 7, 8, 9, 10, 11
SRD0, SRD1, SRD2, SRD3, SRD4, SRD5 = 52, 56, 60, 64, 68, 72

def load_ptrs(a):
    a("s_load_dwordx16 s[16:31], s[0:1], 0")
    a("s_load_dwordx16 s[32:47], s[0:1], 64")
    a("s_load_dwordx2 s[48:49], s[0:1], 128")

class LdsAddr:
    def __init__(self, a, V, base_reg, nwin=3):
        self.regs = [base_reg]
        for w in range(1, nwin):
            r = V.alloc()
            a(f"v_add_u32 v{r}, {65536*w:#x}, v{base_reg}")
            self.regs.append(r)
    def ref(self, c):
        w = c >> 16
        return self.regs[w], c & 0xffff

def direct_frag_addrs(a, V, vlane, wave_off_sgpr, nwin=3):
    t0 = V.alloc(); t1 = V.alloc()
    a(f"v_and_b32 v{t0}, 31, v{vlane}")
    a(f"v_bfe_u32 v{t1}, v{vlane}, 1, 3")
    r0 = V.alloc()
    a(f"v_lshrrev_b32 v{r0}, 5, v{vlane}")
    a(f"v_xor_b32 v{t1}, v{t1}, v{r0}")
    a(f"v_lshlrev_b32 v{t1}, 4, v{t1}")
    a(f"v_lshl_add_u32 v{r0}, v{t0}, 7, v{t1}")
    if wave_off_sgpr is not None:
        a(f"v_add_u32 v{r0}, s{wave_off_sgpr}, v{r0}")
    out = [LdsAddr(a, V, r0, nwin)]
    for ks in range(1, 4):
        r = V.alloc()
        a(f"v_xor_b32 v{r}, {32*ks}, v{r0}")
        out.append(LdsAddr(a, V, r, nwin))
    return out

def swz_chunk(a, V, vlane, jj):
    r = V.alloc(); t = V.alloc()
    a(f"v_lshrrev_b32 v{t}, 4, v{vlane}")
    if jj & 1: a(f"v_xor_b32 v{t}, 4, v{t}")
    a(f"v_and_b32 v{r}, 7, v{vlane}")
    a(f"v_xor_b32 v{r}, v{r}, v{t}")
    a(f"v_lshlrev_b32 v{r}, 4, v{r}")
    return r

def tr_addr(a, V, vlane, rowbytes, perm, nwin=3, xor_unit=None):
    r_ = V.alloc(); c_ = V.alloc(); t = V.alloc(); out = V.alloc()
    a(f"v_bfe_u32 v{r_}, v{vlane}, 2, 2")
    a(f"v_lshrrev_b32 v{t}, 5, v{vlane}")
    a(f"v_lshl_add_u32 v{t}, v{t}, 3, v{r_}")
    a(f"v_mul_u32_u24 v{out}, {rowbytes}, v{t}")
    if perm:
        a(f"v_and_b32 v{c_}, 1, v{vlane}")
        a(f"v_lshl_add_u32 v{out}, v{c_}, 5, v{out}")
        a(f"v_bfe_u32 v{c_}, v{vlane}, 4, 1")
        a(f"v_lshl_add_u32 v{out}, v{c_}, 4, v{out}")
        a(f"v_bfe_u32 v{c_}, v{vlane}, 1, 1")
        a(f"v_lshl_add_u32 v{out}, v{c_}, 3, v{out}")
    else:
        a(f"v_bfe_u32 v{c_}, v{vlane}, 4, 1")
        a(f"v_lshl_add_u32 v{out}, v{c_}, 5, v{out}")
        a(f"v_and_b32 v{c_}, 3, v{vlane}")
        a(f"v_lshl_add_u32 v{out}, v{c_}, 3, v{out}")
    if xor_unit is not None:
        a(f"v_xor_b32 v{r_}, s{xor_unit}, v{r_}")
        a(f"v_lshl_add_u32 v{out}, v{r_}, 6, v{out}")
    return LdsAddr(a, V, out, nwin)

def dma(srd_, voff, soff, inst_off):
    o = f" offset:{inst_off}" if inst_off else ""
    return f"buffer_load_dwordx4 v{voff}, s[{srd_}:{srd_+3}], {soff} offen{o} lds"

def natural_rows_voffs(a, V, vlane, row0_sgpr, stride, npieces=4):
    sw = [swz_chunk(a, V, vlane, 0), swz_chunk(a, V, vlane, 1)]
    t = V.alloc()
    a(f"v_lshrrev_b32 v{t}, 3, v{vlane}")
    a(f"v_add_u32 v{t}, s{row0_sgpr}, v{t}")
    a(f"v_mul_u32_u24 v{t}, {stride}, v{t}")
    outs = []
    for jj in range(npieces):
        r = V.alloc()
        a(f"v_add_u32 v{r}, v{t}, v{sw[jj&1]}")
        if jj: a(f"v_add_u32 v{r}, {8*jj*stride - 1024*jj}, v{r}")
        outs.append(r)
    return outs
```

```python
class Asm:
    def __init__(self):
        self.lines = []
        self.nlab = 0
    def __call__(self, s):
        for ln in s.strip("\n").split("\n"):
            self.lines.append("    " + ln.strip())
    def label(self, l):
        self.lines.append(l + ":")
    def newlabel(self, p="L"):
        self.nlab += 1
        return f"{p}_{self.nlab}"
    def raw(self, s):
        self.lines.append(s)
    def text(self):
        return "\n".join(self.lines) + "\n"

class Regs:
    def __init__(self, start, limit, pfx):
        self.n = start; self.limit = limit; self.pfx = pfx; self.hi = start
    def alloc(self, cnt=1, align=1):
        self.n = (self.n + align - 1) // align * align
        r = self.n; self.n += cnt
        assert self.n <= self.limit, f"out of {self.pfx} regs: {self.n}"
        self.hi = max(self.hi, self.n)
        return r
    def mark(self): return self.n
    def release(self, m): self.n = m

def v(r, n=1): return f"v{r}" if n == 1 else f"v[{r}:{r+n-1}]"
def s(r, n=1): return f"s{r}" if n == 1 else f"s[{r}:{r+n-1}]"

def srd(a, dst, base_lo, nbytes, add=0):
    if add:
        a(f"s_add_u32 s{dst}, s{base_lo}, {add:#x}")
        a(f"s_addc_u32 s{dst+1}, s{base_lo+1}, 0")
    else:
        a(f"s_mov_b32 s{dst}, s{base_lo}")
        a(f"s_mov_b32 s{dst+1}, s{base_lo+1}")
    a(f"s_mov_b32 s{dst+2}, {nbytes:#x}")
    a(f"s_mov_b32 s{dst+3}, 0x00020000")

def kdesc(name, vgpr, sgpr=102):
    acc = (vgpr + 3) // 4 * 4
    return f""".p2align 6
.amdhsa_kernel {name}
  .amdhsa_next_free_vgpr {vgpr}
  .amdhsa_next_free_sgpr {sgpr}
  .amdhsa_accum_offset {acc}
  .amdhsa_group_segment_fixed_size 0
  .amdhsa_kernarg_size 136
  .amdhsa_user_sgpr_count 2
  .amdhsa_user_sgpr_kernarg_segment_ptr 1
  .amdhsa_system_sgpr_workgroup_id_x 1
.end_amdhsa_kernel
"""

def gemm_loop(a, nst, nslots, ndma, dma_fn, reads_fn, mfma_fn, nreads, LA=2, pre_vm=0, post_first_wait=None):
    first = min(nslots, nst)
    for st in range(first):
        for t in dma_fn(st): a(t)
    issued = first - 1
    if post_first_wait: post_first_wait()
    a(f"s_waitcnt vmcnt({ndma*(issued-0)})")
    a("s_barrier")
    nk = nst * 4
    pend = []
    out_reads = []
    def issue_reads(kp):
        for t in reads_fn(kp): a(t)
        out_reads.append(kp)
    for kp in range(min(LA, nk)):
        issue_reads(kp)
    for kp in range(nk):
        nx = kp + LA
        if nx < nk:
            if nx % 4 == 0:
                st = nx // 4
                assert not pend
                a(f"s_waitcnt vmcnt({ndma*(issued-st)}) lgkmcnt(0)")
                out_reads.clear()
                a("s_barrier")
                rf = st - 1 + nslots
                if rf < nst:
                    pend = list(dma_fn(rf)); issued = rf
            issue_reads(nx)
        if kp in out_reads:
            idx = out_reads.index(kp)
            later = len(out_reads) - 1 - idx
            a(f"s_waitcnt lgkmcnt({later*nreads})")
            del out_reads[:idx+1]
        for m in mfma_fn(kp):
            a(m)
            if pend: a(pend.pop(0))
    assert not pend
```

```python
from common import *
from roles_gemm import f32bits

GROUPS = [1, 1, 2, 4, 4, 4, 4]

def kernel_att(a):
    V = Regs(2, 256, "v"); L = 1
    S_PB, S_HD, S_CNT, S_FLAG = 12, 13, 14, 15
    a("s_cmp_ge_u32 s2, 256")
    a("s_cbranch_scc1 L_att_end")
    a("s_load_dwordx2 s[48:49], s[0:1], 128")
    a(f"v_and_b32 v{L}, 63, v0")
    a("v_lshrrev_b32 v2, 6, v0")
    a("s_and_b32 s3, s2, 7")
    a(f"v_readfirstlane_b32 s{S_W}, v2")
    a("s_lshr_b32 s4, s2, 3")
    a(f"s_and_b32 s{S_PB}, s4, 7")
    a("s_lshl_b32 s3, s3, 3")
    a(f"s_add_u32 s{S_PB}, s{S_PB}, s3")
    a("s_lshr_b32 s4, s4, 3")
    a("s_lshl_b32 s4, s4, 3")
    a(f"s_add_u32 s{S_HD}, s4, s{S_W}")
    V.alloc()
    vd = V.alloc(); qo = V.alloc(); hv = V.alloc(); t = V.alloc()
    a(f"v_lshlrev_b32 v{vd}, 4, v{L}")
    a(f"v_and_b32 v{qo}, 31, v{L}")
    a(f"s_lshl_b32 s{S_T0}, s{S_PB}, 5")
    a(f"v_add_u32 v{qo}, s{S_T0}, v{qo}")
    a(f"v_mul_u32_u24 v{qo}, 1152, v{qo}")
    a(f"v_lshrrev_b32 v{hv}, 5, v{L}")
    a(f"s_mul_i32 s{S_T0}, s{S_HD}, 36")
    a(f"v_add_u32 v{qo}, s{S_T0}, v{qo}")
    q2 = V.alloc()
    a(f"v_mov_b32 v{q2}, v{qo}")
    a(f"v_lshl_add_u32 v{qo}, v{hv}, 4, v{qo}")
    a("s_waitcnt lgkmcnt(0)")
    srd(a, SRD0, P_WS, 163840, add=WS_KV)
    srd(a, SRD1, P_WS, XB, add=WS_Q)
    srd(a, SRD2, P_WS, XB, add=WS_O)
    QL = V.alloc(4, 4); QH = V.alloc(4, 4)
    B = 0; cum = []
    npieces = 0
    for gi, n in enumerate(GROUPS):
        a(f"s_mul_i32 s{S_KO}, s{S_W}, {n*1024}")
        if B: a(f"s_add_u32 s{S_KO}, s{S_KO}, {B}")
        a(f"s_mov_b32 m0, s{S_KO}")
        a("s_nop 0")
        for jj in range(n):
            a(dma(SRD0, vd, f"s{S_KO}", jj*1024))
        B += n * 8192; npieces += n
        cum.append((B, npieces))
        if gi == 0:
            a(f"buffer_load_dwordx4 v[{QL}:{QL+3}], v{qo}, s[{SRD1}:{SRD1+3}], 0 offen")
            a(f"buffer_load_dword v{QH}, v{q2}, s[{SRD1}:{SRD1+3}], 0 offen offset:32")
    TOT = npieces
    kl = LdsAddr(a, V, vd)
    r = V.alloc()
    a(f"v_and_b32 v{t}, 31, v{L}")
    a(f"v_lshlrev_b32 v{r}, 3, v{t}")
    kh = LdsAddr(a, V, r)
    r = V.alloc()
    a(f"v_min_u32 v{t}, 18, v{t}")
    a(f"v_lshlrev_b32 v{r}, 4, v{t}")
    a(f"v_mul_u32_u24 v{t}, 304, v{hv}")
    a(f"v_add_u32 v{r}, v{r}, v{t}")
    va = LdsAddr(a, V, r)
    KL = [V.alloc(4, 4), V.alloc(4, 4)]; KH = [V.alloc(4, 4), V.alloc(4, 4)]
    VB = [V.alloc(8, 4), V.alloc(8, 4)]
    S = [V.alloc(16, 4), V.alloc(16, 4)]
    P = V.alloc(8, 4); O = V.alloc(16, 4)
    ma = V.alloc(); mb = V.alloc(); mx = V.alloc(); mt = V.alloc()
    for b in range(2):
        a(f"v_mov_b32 v{KH[b]+2}, 0")
        a(f"v_mov_b32 v{KH[b]+3}, 0")
    a(f"v_mov_b32 v{QH+2}, 0")
    a(f"v_mov_b32 v{QH+3}, 0")
    a(f"s_mov_b32 s{S_CNT}, 1")
    a(f"s_mov_b32 s{S_FLAG}, 0")
    a(f"v_cmp_gt_u32 s[{SRD3}:{SRD3+1}], 32, v{L}")
    a(f"s_waitcnt vmcnt({TOT-1})")
    a("s_barrier")
    a(f"v_cndmask_b32 v{QH}, 0, v{QH}, s[{SRD3}:{SRD3+1}]")
    nbar = 1
    a.label("L_att_mpass")
    a(f"v_mov_b32 v{QH+1}, 0")
    a(f"v_mov_b32 v{ma}, v{kl.regs[0]}")
    a(f"v_mov_b32 v{mb}, v{kh.regs[0]}")
    a(f"v_mov_b32 v{mx}, 0xff800000")
    a.label("L_att_mloop")
    a(f"ds_read_b128 v[{KL[0]}:{KL[0]+3}], v{ma}")
    a(f"ds_read_b64 v[{KH[0]}:{KH[0]+1}], v{mb} offset:1024")
    a(f"v_add_u32 v{ma}, {KV_TILE}, v{ma}")
    a(f"v_add_u32 v{mb}, {KV_TILE}, v{mb}")
    a("s_waitcnt lgkmcnt(0)")
    a(f"v_mfma_f32_32x32x16_bf16 v[{S[0]}:{S[0]+15}], v[{KL[0]}:{KL[0]+3}], v[{QL}:{QL+3}], 0")
    a(f"v_mfma_f32_32x32x16_bf16 v[{S[0]}:{S[0]+15}], v[{KH[0]}:{KH[0]+3}], v[{QH}:{QH+3}], v[{S[0]}:{S[0]+15}]")
    a(f"s_sub_u32 s{S_CNT}, s{S_CNT}, 1")
    a("s_nop 7\ns_nop 3")
    for j in range(8):
        a(f"v_max3_f32 v{mx}, v{S[0]+2*j}, v{S[0]+2*j+1}, v{mx}")
    a(f"s_cmp_lg_u32 s{S_CNT}, 0")
    a("s_cbranch_scc1 L_att_mloop")
    a(f"v_mov_b32 v{mt}, v{mx}")
    a("s_nop 1")
    a(f"v_permlane32_swap_b32 v{mt}, v{mx}")
    a("s_nop 1")
    a(f"v_max_f32 v{mx}, v{mx}, v{mt}")
    a(f"v_and_b32 v{mt}, 0xffff0000, v{mx}")
    a(f"v_sub_f32 v{mx}, v{mx}, v{mt}")
    a(f"v_cvt_pk_bf16_f32 v{mt}, -v{mt}, -v{mx}")
    a(f"v_cndmask_b32 v{QH+1}, 0, v{mt}, s[{SRD3}:{SRD3+1}]")
    def avail(nb): return cum[nb-1][0] // KV_TILE
    state = {'nbar': nbar}
    def need(tile):
        while tile >= avail(state['nbar']):
            state['nbar'] += 1
            a(f"s_waitcnt vmcnt({TOT - cum[state['nbar']-1][1]})")
            a("s_barrier")
    def rdK(tile):
        b = tile % 2
        r, o = kl.ref(tile*KV_TILE)
        a(f"ds_read_b128 v[{KL[b]}:{KL[b]+3}], v{r} offset:{o}")
        r, o = kh.ref(tile*KV_TILE + 1024)
        a(f"ds_read_b64 v[{KH[b]}:{KH[b]+1}], v{r} offset:{o}")
    def rdV(tile):
        b = tile % 2
        for st in range(2):
            r, o = va.ref(tile*KV_TILE + 1280 + 608*st)
            a(f"ds_read_b128 v[{VB[b]+4*st}:{VB[b]+4*st+3}], v{r} offset:{o}")
    def qk(tile, part):
        b = tile % 2; s_ = S[b]
        if part == 0:
            a(f"v_mfma_f32_32x32x16_bf16 v[{s_}:{s_+15}], v[{KL[b]}:{KL[b]+3}], v[{QL}:{QL+3}], 0")
        else:
            a(f"v_mfma_f32_32x32x16_bf16 v[{s_}:{s_+15}], v[{KH[b]}:{KH[b]+3}], v[{QH}:{QH+3}], v[{s_}:{s_+15}]")
    def pv(tile, st):
        b = tile % 2
        c = "0" if (tile == 0 and st == 0) else f"v[{O}:{O+15}]"
        a(f"v_mfma_f32_32x32x16_bf16 v[{O}:{O+15}], v[{VB[b]+4*st}:{VB[b]+4*st+3}], v[{P+4*st}:{P+4*st+3}], {c}")
    def ex(tile, j):
        s_ = S[tile % 2]
        a(f"v_exp_f32 v{s_+j}, v{s_+j}")
    def cv(tile, j):
        s_ = S[tile % 2]
        a(f"v_cvt_pk_bf16_f32 v{P+j}, v{s_+2*j}, v{s_+2*j+1}")
    NT = 64
    rdK(0); rdK(1); rdV(0)
    a("s_waitcnt lgkmcnt(4)")
    qk(0, 0); qk(0, 1)
    need(2)
    a("s_nop 7")
    for i in range(NT):
        if i == 0:
            rdK(2); rdV(1)
            a("s_waitcnt lgkmcnt(4)")
        if i + 1 < NT: qk(i+1, 0)
        for j in range(4): ex(i, j)
        if i + 1 < NT: qk(i+1, 1)
        for j in range(4, 8): ex(i, j)
        for j in range(4): cv(i, j)
        ex(i, 8); ex(i, 9)
        pv(i, 0)
        for j in range(10, 16): ex(i, j)
        for j in range(4, 8): cv(i, j)
        nrd = 0
        if i + 3 < NT:
            need(i+3)
            rdK(i+3); nrd += 2
        else:
            a("s_nop 1")
        pv(i, 1)
        if i + 2 < NT:
            rdV(i+2); nrd += 2
        if i + 1 < NT:
            a(f"s_waitcnt lgkmcnt({nrd})")
    a("s_nop 7\ns_nop 7")
    a(f"s_cmp_lg_u32 s{S_FLAG}, 0")
    a("s_cbranch_scc1 L_att_fin")
    a(f"v_mov_b32 v{mt}, {f32bits(2.0**40):#x}")
    a(f"v_cmp_nlt_f32 vcc, v{O+12}, v{mt}")
    a("s_nop 4")
    a("s_cbranch_vccz L_att_fin")
    a(f"s_mov_b32 s{S_FLAG}, 1")
    a(f"s_mov_b32 s{S_CNT}, 64")
    a("s_branch L_att_mpass")
    a.label("L_att_fin")
    a(f"v_rcp_f32 v{mt}, v{O+12}")
    a("s_nop 0")
    for j in range(10):
        a(f"v_mul_f32 v{O+j}, v{O+j}, v{mt}")
    for j in range(5):
        a(f"v_cvt_pk_bf16_f32 v{P+j}, v{O+2*j}, v{O+2*j+1}")
    a(f"buffer_store_dwordx4 v[{P}:{P+3}], v{qo}, s[{SRD2}:{SRD2+3}], 0 offen")
    a("s_mov_b32 exec_hi, 0")
    a(f"buffer_store_dword v{P+4}, v{q2}, s[{SRD2}:{SRD2+3}], 0 offen offset:32")
    a.label("L_att_end")
    a("s_endpgm")
    return V.hi
```

```python
from common import *

QSCALE = math.log2(math.e) / math.sqrt(18.0)
import struct
def f32bits(x): return struct.unpack("<I", struct.pack("<f", x))[0]

def role_qo(a, is_out):
    V = Regs(2, 256, "v")
    L = 1
    STB = 28672; NSL = 5
    if is_out:
        srd(a, SRD0, P_WS, XB, add=WS_O)
        srd(a, SRD1, P_WO, WB)
        srd(a, SRD2, P_OUT, 2048*1152*4)
    else:
        srd(a, SRD0, P_BX, XB)
        srd(a, SRD1, P_WQ, WB)
        srd(a, SRD2, P_WS, XB, add=WS_Q)
    a(f"s_lshl_b32 s{S_T0}, s{S_CHUNK}, 7")
    a(f"s_lshl_b32 s{S_T1}, s{S_W}, 5")
    a(f"s_add_u32 s{S_T0}, s{S_T0}, s{S_T1}")
    xo = natural_rows_voffs(a, V, L, S_T0, 1152)
    a(f"s_mul_i32 s{S_T1}, s{S_JJ}, 192")
    a(f"s_mul_i32 s{S_T2}, s{S_W}, 192")
    wo = []
    t = V.alloc(); k = V.alloc(); c = V.alloc()
    for jj in range(3):
        r = V.alloc()
        a(f"v_add_u32 v{t}, s{S_T2}, v{L}")
        if jj: a(f"v_add_u32 v{t}, {64*jj}, v{t}")
        a(f"v_mul_u32_u24 v{k}, 43691, v{t}")
        a(f"v_lshrrev_b32 v{k}, 19, v{k}")
        a(f"v_mul_u32_u24 v{c}, 12, v{k}")
        a(f"v_sub_u32 v{c}, v{t}, v{c}")
        a(f"v_mul_u32_u24 v{r}, 1152, v{k}")
        a(f"v_lshl_add_u32 v{r}, v{c}, 4, v{r}")
        a(f"v_add_u32 v{r}, s{S_T1}, v{r}")
        if jj: a(f"v_subrev_u32 v{r}, {1024*jj}, v{r}")
        wo.append(r)
    a(f"s_lshl_b32 s{S_M0A}, s{S_W}, 12")
    a(f"s_mul_i32 s{S_M0B}, s{S_W}, 3072")
    a(f"s_add_u32 s{S_M0B}, s{S_M0B}, 16384")
    def dma_fn(st):
        sb = (st % NSL) * STB
        it = []
        for jj in range(4):
            pre = f"s_add_u32 m0, s{S_M0A}, {sb}\ns_mov_b32 s{S_KO}, {st*128}\n" if jj == 0 else ""
            it.append(pre + dma(SRD0, xo[jj], f"s{S_KO}", jj*1024))
        for jj in range(3):
            pre = f"s_add_u32 m0, s{S_M0B}, {sb}\ns_mov_b32 s{S_KO}, {st*73728}\n" if jj == 0 else ""
            it.append(pre + dma(SRD1, wo[jj], f"s{S_KO}", jj*1024))
        return it
    holder = {}
    def post():
        holder['xa'] = direct_frag_addrs(a, V, L, S_M0A)
        holder['wa'] = tr_addr(a, V, L, 192, True)
        holder['fb'] = V.alloc(48, 4)
        holder['acc'] = V.alloc(48, 4)
        so = V.alloc(); t = V.alloc()
        a(f"v_and_b32 v{so}, 31, v{L}")
        a(f"v_add_u32 v{so}, s{S_T0}, v{so}")
        a(f"v_lshrrev_b32 v{t}, 5, v{L}")
        if is_out:
            a(f"v_mul_u32_u24 v{so}, 4608, v{so}")
            a(f"v_lshl_add_u32 v{so}, v{t}, 6, v{so}")
            a(f"s_lshl_b32 s{S_T1}, s{S_T1}, 1")
            a(f"s_add_u32 s{S_T1}, s{S_T1}, 2304")
        else:
            a(f"v_mul_u32_u24 v{so}, 1152, v{so}")
            a(f"v_lshl_add_u32 v{so}, v{t}, 5, v{so}")
        a(f"v_add_u32 v{so}, s{S_T1}, v{so}")
        holder['so'] = so
    def reads_fn(kp):
        st, ks = kp // 4, kp % 4
        sb = (st % NSL) * STB
        fb = holder['fb'] + 16 * (kp % 3)
        r, o = holder['xa'][ks].ref(sb)
        out = [f"ds_read_b128 v[{fb}:{fb+3}], v{r} offset:{o}"]
        for n in range(3):
            for hf in range(2):
                r, o = holder['wa'].ref(sb + 16384 + (16*ks + 4*hf)*192 + n*64)
                d = fb + 4 + 4*n + 2*hf
                out.append(f"ds_read_b64_tr_b16 v[{d}:{d+1}], v{r} offset:{o}")
        return out
    def mfma_fn(kp):
        fb = holder['fb'] + 16 * (kp % 3); acc = holder['acc']
        out = []
        for n in range(3):
            c = "0" if kp == 0 else f"v[{acc+16*n}:{acc+16*n+15}]"
            out.append(f"v_mfma_f32_32x32x16_bf16 v[{acc+16*n}:{acc+16*n+15}], v[{fb+4+4*n}:{fb+7+4*n}], v[{fb}:{fb+3}], {c}")
        return out
    gemm_loop(a, 9, NSL, 7, dma_fn, reads_fn, mfma_fn, 7, LA=2, post_first_wait=post)
    acc = holder['acc']; so = holder['so']
    a("s_nop 7\ns_nop 7")
    if is_out:
        for n in range(3):
            for q in range(4):
                a(f"buffer_store_dwordx4 v[{acc+16*n+4*q}:{acc+16*n+4*q+3}], v{so}, s[{SRD2}:{SRD2+3}], 0 offen offset:{n*128+16*q}")
    else:
        a(f"s_mov_b32 s{S_T2}, {f32bits(QSCALE):#x}")
        pk = holder['fb']
        for n in range(3):
            for i in range(16):
                a(f"v_mul_f32 v{acc+16*n+i}, s{S_T2}, v{acc+16*n+i}")
            for j in range(8):
                a(f"v_cvt_pk_bf16_f32 v{pk+8*n+j}, v{acc+16*n+2*j}, v{acc+16*n+2*j+1}")
            for q in range(2):
                a(f"buffer_store_dwordx4 v[{pk+8*n+4*q}:{pk+8*n+4*q+3}], v{so}, s[{SRD2}:{SRD2+3}], 0 offen offset:{n*64+16*q}")
    a("s_endpgm")
    return V.hi

def swap23(a, V, src):
    r = V.alloc(); t = V.alloc()
    a(f"v_and_b32 v{r}, 0x13, v{src}")
    a(f"v_bfe_u32 v{t}, v{src}, 2, 1")
    a(f"v_lshl_add_u32 v{r}, v{t}, 3, v{r}")
    a(f"v_bfe_u32 v{t}, v{src}, 3, 1")
    a(f"v_lshl_add_u32 v{r}, v{t}, 2, v{r}")
    return r

def role_kv(a):
    V = Regs(2, 256, "v"); L = 1
    STB = 24576; NSL = 6
    srd(a, SRD0, P_BX, XB)
    srd(a, SRD1, P_WK, 576*36)
    srd(a, SRD2, P_WV, 576*36)
    srd(a, SRD3, P_WS, 163840, add=WS_KV)
    a(f"s_lshl_b32 s{S_T0}, s{S_CHUNK}, 7")
    a(f"s_lshl_b32 s{S_T1}, s{S_W}, 5")
    a(f"s_add_u32 s{S_T0}, s{S_T0}, s{S_T1}")
    xo = natural_rows_voffs(a, V, L, S_T0, 1152)
    wo = V.alloc(); t = V.alloc()
    a(f"s_lshl_b32 s{S_T1}, s{S_W}, 4")
    a(f"v_lshrrev_b32 v{wo}, 2, v{L}")
    a(f"v_add_u32 v{wo}, s{S_T1}, v{wo}")
    a(f"v_mul_u32_u24 v{wo}, 36, v{wo}")
    a(f"v_and_b32 v{t}, 3, v{L}")
    a(f"v_lshl_add_u32 v{wo}, v{t}, 4, v{wo}")
    a(f"s_lshl_b32 s{S_M0A}, s{S_W}, 12")
    a(f"s_lshl_b32 s{S_M0B}, s{S_W}, 10")
    def dma_fn(st):
        sb = (st % NSL) * STB
        it = []
        for jj in range(4):
            pre = f"s_add_u32 m0, s{S_M0A}, {sb}\ns_mov_b32 s{S_KO}, {st*128}\n" if jj == 0 else ""
            it.append(pre + dma(SRD0, xo[jj], f"s{S_KO}", jj*1024))
        it.append(f"s_add_u32 m0, s{S_M0B}, {sb+16384}\ns_mov_b32 s{S_KO}, {st*2304}\n" + dma(SRD1, wo, f"s{S_KO}", 0))
        it.append(f"s_add_u32 m0, s{S_M0B}, {sb+20480}\ns_nop 0\n" + dma(SRD2, wo, f"s{S_KO}", 0))
        return it
    H = {}
    def post():
        H['xa'] = direct_frag_addrs(a, V, L, S_M0A)
        H['ka'] = tr_addr(a, V, L, 64, True)
        H['va'] = tr_addr(a, V, L, 64, False)
        H['fb'] = V.alloc(36, 4)
        H['acc'] = V.alloc(32, 4)
    def reads_fn(kp):
        st, ks = kp // 4, kp % 4
        sb = (st % NSL) * STB
        fb = H['fb'] + 12 * (kp % 3)
        r, o = H['xa'][ks].ref(sb)
        out = [f"ds_read_b128 v[{fb}:{fb+3}], v{r} offset:{o}"]
        for n, key in enumerate(('ka', 'va')):
            for hf in range(2):
                r, o = H[key].ref(sb + 16384 + 4096*n + (16*ks + 4*hf)*64)
                d = fb + 4 + 4*n + 2*hf
                out.append(f"ds_read_b64_tr_b16 v[{d}:{d+1}], v{r} offset:{o}")
        return out
    def mfma_fn(kp):
        fb = H['fb'] + 12 * (kp % 3); acc = H['acc']
        c0 = "0" if kp == 0 else f"v[{acc}:{acc+15}]"
        c1 = "0" if kp == 0 else f"v[{acc+16}:{acc+31}]"
        return [f"v_mfma_f32_32x32x16_bf16 v[{acc}:{acc+15}], v[{fb+4}:{fb+7}], v[{fb}:{fb+3}], {c0}",
                f"v_mfma_f32_32x32x16_bf16 v[{acc+16}:{acc+31}], v[{fb}:{fb+3}], v[{fb+8}:{fb+11}], {c1}"]
    gemm_loop(a, 9, NSL, 6, dma_fn, reads_fn, mfma_fn, 5, LA=2, post_first_wait=post)
    acc = H['acc']; pk = H['fb']
    a(f"s_lshl_b32 s{S_T0}, s{S_CHUNK}, 2")
    a(f"s_add_u32 s{S_T0}, s{S_T0}, s{S_W}")
    a(f"s_mul_i32 s{S_T0}, s{S_T0}, {KV_TILE}")
    kk = V.alloc(); hh = V.alloc()
    a(f"v_and_b32 v{kk}, 31, v{L}")
    a(f"v_lshrrev_b32 v{hh}, 5, v{L}")
    i_ = swap23(a, V, kk)
    a16 = V.alloc(); a8 = V.alloc(); av = V.alloc(); ones = V.alloc()
    a(f"v_lshlrev_b32 v{a16}, 4, v{i_}")
    a(f"v_lshlrev_b32 v{a8}, 3, v{i_}")
    a(f"v_lshl_add_u32 v{av}, v{hh}, 3, v{a16}")
    a(f"v_mov_b32 v{ones}, 0x3f803f80")
    a("s_nop 7\ns_nop 7")
    for j in range(16):
        a(f"v_cvt_pk_bf16_f32 v{pk+j}, v{acc+2*j}, v{acc+2*j+1}")
    a(f"v_cmp_eq_u32 vcc, 18, v{kk}")
    a("s_nop 1")
    for j in range(8, 16):
        a(f"v_cndmask_b32 v{pk+j}, v{pk+j}, v{ones}, vcc")
    R3 = f"s[{SRD3}:{SRD3+3}]"
    a("s_mov_b32 exec_hi, 0")
    a(f"buffer_store_dwordx4 v[{pk}:{pk+3}], v{a16}, {R3}, s{S_T0} offen")
    a(f"buffer_store_dwordx4 v[{pk+4}:{pk+7}], v{a16}, {R3}, s{S_T0} offen offset:512")
    a("s_mov_b64 exec, -1")
    a(f"v_mov_b32 v{pk+16}, v{pk}")
    a(f"v_mov_b32 v{pk+17}, v{ones}")
    a("s_mov_b32 exec_lo, 0")
    a(f"buffer_store_dwordx2 v[{pk+16}:{pk+17}], v{a8}, {R3}, s{S_T0} offen offset:1024")
    a("s_mov_b32 exec_lo, 0x7ffff")
    a("s_mov_b32 exec_hi, 0x7ffff")
    for g in range(4):
        a(f"buffer_store_dwordx2 v[{pk+8+2*g}:{pk+9+2*g}], v{av}, {R3}, s{S_T0} offen offset:{1280 + (g>>1)*608 + (g&1)*304}")
    a("s_endpgm")
    return V.hi
```

```python
from common import *
from roles_gemm import f32bits
LOG2E = math.log2(math.e)

def cmul_add(a, dr, di, ar, ai, br, bi, cr=None, ci=None):
    if cr is None:
        a(f"v_mul_f32 v{dr}, v{ar}, v{br}")
        a(f"v_mul_f32 v{di}, v{ar}, v{bi}")
    else:
        a(f"v_fma_f32 v{dr}, v{ar}, v{br}, v{cr}")
        a(f"v_fma_f32 v{di}, v{ar}, v{bi}, v{ci}")
    a(f"v_fma_f32 v{dr}, -v{ai}, v{bi}, v{dr}")
    a(f"v_fma_f32 v{di}, v{ai}, v{br}, v{di}")

def pk(op, d, x, y, z=None, neg=(0,0,0)):
    n = ""
    if any(neg):
        k = 3 if z is not None else 2
        lst = ",".join(str(i) for i in neg[:k])
        n = f" neg_lo:[{lst}] neg_hi:[{lst}]"
    if z is None:
        return f"v_pk_{op}_f32 v[{d}:{d+1}], v[{x}:{x+1}], v[{y}:{y+1}]{n}"
    return f"v_pk_{op}_f32 v[{d}:{d+1}], v[{x}:{x+1}], v[{y}:{y+1}], v[{z}:{z+1}]{n}"

def role_ssm(a):
    V = Regs(2, 256, "v"); L = 1
    STB = 32768; NSL = 5
    S_WT, S_WS, S_P0, S_AW, S_BW = 12, 13, 14, 15, 50
    srd(a, SRD0, P_AX, XB)
    a(f"s_cmp_lt_u32 s{S_W}, 2")
    a(f"s_cselect_b32 s{SRD1}, s{P_BRE}, s{P_BIM}")
    a(f"s_cselect_b32 s{SRD1+1}, s{P_BRE+1}, s{P_BIM+1}")
    a(f"s_mov_b32 s{SRD1+2}, {WB:#x}")
    a(f"s_mov_b32 s{SRD1+3}, 0x00020000")
    srd(a, SRD2, P_LRE, 1152)
    srd(a, SRD3, P_LIM, 1152)
    srd(a, SRD4, P_LDT, 1152)
    a(f"s_lshr_b32 s{S_WT}, s{S_W}, 1")
    a(f"s_and_b32 s{S_WS}, s{S_W}, 1")
    a(f"s_lshl_b32 s{S_P0}, s{S_JJ}, 6")
    vp = V.alloc(); t = V.alloc()
    a(f"s_lshl_b32 s{S_T0}, s{S_WS}, 5")
    a(f"s_add_u32 s{S_T0}, s{S_T0}, s{S_P0}")
    a(f"v_and_b32 v{vp}, 31, v{L}")
    a(f"v_add_u32 v{vp}, s{S_T0}, v{vp}")
    a(f"v_lshlrev_b32 v{t}, 1, v{vp}")
    lre = V.alloc(); lim = V.alloc(); ldt = V.alloc()
    a(f"buffer_load_ushort v{lre}, v{t}, s[{SRD2}:{SRD2+3}], 0 offen")
    a(f"buffer_load_ushort v{lim}, v{t}, s[{SRD3}:{SRD3+3}], 0 offen")
    a(f"buffer_load_ushort v{ldt}, v{t}, s[{SRD4}:{SRD4+3}], 0 offen")
    sw = [swz_chunk(a, V, L, 0), swz_chunk(a, V, L, 1)]
    a(f"s_lshl_b32 s{S_T0}, s{S_CHUNK}, 7")
    a(f"s_lshl_b32 s{S_T1}, s{S_WT}, 6")
    a(f"s_add_u32 s{S_T0}, s{S_T0}, s{S_T1}")
    a(f"s_lshl_b32 s{S_T1}, s{S_WS}, 3")
    a(f"s_add_u32 s{S_T1}, s{S_T1}, s{S_T0}")
    tt = V.alloc(); t2 = V.alloc()
    a(f"v_and_b32 v{tt}, 32, v{L}")
    a(f"v_bfe_u32 v{t2}, v{L}, 3, 1")
    a(f"v_lshl_add_u32 v{tt}, v{t2}, 4, v{tt}")
    a(f"v_bfe_u32 v{t2}, v{L}, 4, 1")
    a(f"v_add3_u32 v{tt}, v{tt}, v{t2}, s{S_T1}")
    a(f"v_mul_u32_u24 v{tt}, 1152, v{tt}")
    xo = []
    for jj in range(4):
        r = V.alloc()
        a(f"v_add_u32 v{r}, v{tt}, v{sw[jj&1]}")
        if jj: a(f"v_add_u32 v{r}, {2*jj*1152 - 1024*jj}, v{r}")
        xo.append(r)
    a(f"s_lshl_b32 s{S_T1}, s{S_WS}, 5")
    a(f"s_add_u32 s{S_T1}, s{S_T1}, s{S_P0}")
    a(f"v_lshrrev_b32 v{tt}, 3, v{L}")
    a(f"v_add_u32 v{tt}, s{S_T1}, v{tt}")
    a(f"v_mul_u32_u24 v{tt}, 1152, v{tt}")
    bo = []
    for jj in range(4):
        r = V.alloc()
        a(f"v_add_u32 v{r}, v{tt}, v{sw[jj&1]}")
        if jj: a(f"v_add_u32 v{r}, {8*jj*1152 - 1024*jj}, v{r}")
        bo.append(r)
    a(f"s_lshl_b32 s{S_M0A}, s{S_W}, 12")
    def dma_fn(st):
        sb = (st % NSL) * STB
        it = []
        for jj in range(4):
            pre = f"s_add_u32 m0, s{S_M0A}, {sb}\ns_mov_b32 s{S_KO}, {st*128}\n" if jj == 0 else ""
            it.append(pre + dma(SRD0, xo[jj], f"s{S_KO}", jj*1024))
        for jj in range(4):
            pre = f"s_add_u32 m0, s{S_M0A}, {sb+16384}\ns_nop 0\n" if jj == 0 else ""
            it.append(pre + dma(SRD1, bo[jj], f"s{S_KO}", jj*1024))
        return it
    H = {}
    def post():
        a(f"s_lshl_b32 s{S_AW}, s{S_WT}, 13")
        a(f"s_lshl_b32 s{S_BW}, s{S_WS}, 12")
        a(f"s_add_u32 s{S_BW}, s{S_BW}, 16384")
        H['xa'] = direct_frag_addrs(a, V, L, S_AW)
        H['ba'] = direct_frag_addrs(a, V, L, S_BW)
        H['fb'] = V.alloc(48, 4)
        H['re'] = V.alloc(32, 4)
        H['im'] = V.alloc(32, 4)
        a("s_waitcnt vmcnt(40)")
        LR = V.alloc(2, 2); LI = V.alloc(2, 2); CR = V.alloc(2, 2); CI = V.alloc(2, 2)
        l16r = V.alloc(); l16i = V.alloc(); l128r = V.alloc(); l128i = V.alloc()
        m = V.mark()
        dt = V.alloc(); x = V.alloc(); y = V.alloc(); z = V.alloc(); u = V.alloc()
        a(f"v_lshlrev_b32 v{lre}, 16, v{lre}")
        a(f"v_lshlrev_b32 v{lim}, 16, v{lim}")
        a(f"v_lshlrev_b32 v{ldt}, 16, v{ldt}")
        a(f"v_mul_f32 v{dt}, {f32bits(LOG2E):#x}, v{ldt}")
        a(f"v_exp_f32 v{dt}, v{dt}")
        a("s_nop 0")
        a(f"v_cvt_pk_bf16_f32 v{dt}, v{dt}, v{dt}")
        a(f"v_and_b32 v{dt}, 0xffff0000, v{dt}")
        a(f"v_mul_f32 v{x}, v{dt}, v{lre}")
        a(f"v_mul_f32 v{y}, v{dt}, v{lim}")
        a(f"v_mul_f32 v{x}, {f32bits(LOG2E):#x}, v{x}")
        a(f"v_exp_f32 v{x}, v{x}")
        a(f"v_mul_f32 v{y}, 0.15915494, v{y}")
        a(f"v_fract_f32 v{y}, v{y}")
        a(f"v_cos_f32 v{z}, v{y}")
        a(f"v_sin_f32 v{u}, v{y}")
        a("s_nop 0")
        a(f"v_mul_f32 v{LR}, v{x}, v{z}")
        a(f"v_mul_f32 v{LI}, v{x}, v{u}")
        a(f"v_mov_b32 v{LR+1}, v{LR}")
        a(f"v_mov_b32 v{LI+1}, v{LI}")
        a(f"v_add_f32 v{x}, -1.0, v{LR}")
        a(f"v_mul_f32 v{y}, v{lre}, v{lre}")
        a(f"v_fma_f32 v{y}, v{lim}, v{lim}, v{y}")
        a(f"v_rcp_f32 v{y}, v{y}")
        a(f"v_mul_f32 v{z}, v{x}, v{lre}")
        a(f"v_fma_f32 v{z}, v{LI}, v{lim}, v{z}")
        a(f"v_mul_f32 v{u}, v{LI}, v{lre}")
        a(f"v_fma_f32 v{u}, -v{x}, v{lim}, v{u}")
        a(f"v_add_f32 v{y}, v{y}, v{y}")
        a(f"v_mul_f32 v{CR}, v{z}, v{y}")
        a(f"v_mul_f32 v{CI}, v{u}, v{y}")
        a(f"v_mov_b32 v{CR+1}, v{CR}")
        a(f"v_mov_b32 v{CI+1}, v{CI}")
        def sq(dr, di, sr, si):
            a(f"v_mul_f32 v{z}, v{si}, v{si}")
            a(f"v_mul_f32 v{u}, v{sr}, v{si}")
            a(f"v_fma_f32 v{dr}, v{sr}, v{sr}, -v{z}")
            a(f"v_add_f32 v{di}, v{u}, v{u}")
        sq(l16r, l16i, LR, LI)
        for _ in range(3): sq(l16r, l16i, l16r, l16i)
        sq(l128r, l128i, l16r, l16i)
        for _ in range(2): sq(l128r, l128i, l128r, l128i)
        V.release(m)
        H.update(LR=LR, LI=LI, CR=CR, CI=CI, l16r=l16r, l16i=l16i, l128r=l128r, l128i=l128i)
    def reads_fn(kp):
        st, ks = kp // 4, kp % 4
        sb = (st % NSL) * STB
        fb = H['fb'] + 16 * (kp % 3)
        out = []
        for i, (key, off) in enumerate((('xa', 0), ('ba', 0), ('xa', 4096), ('ba', 8192))):
            r, o = H[key][ks].ref(sb + off)
            out.append(f"ds_read_b128 v[{fb+4*i}:{fb+4*i+3}], v{r} offset:{o}")
        return out
    def mfma_fn(kp):
        fb = H['fb'] + 16 * (kp % 3)
        out = []
        for (m, xb) in ((0, fb), (1, fb+8)):
            for (acc, bb) in ((H['re'], fb+4), (H['im'], fb+12)):
                d = acc + 16*m
                c = "0" if kp == 0 else f"v[{d}:{d+15}]"
                out.append(f"v_mfma_f32_32x32x16_bf16 v[{d}:{d+15}], v[{xb}:{xb+3}], v[{bb}:{bb+3}], {c}")
        return [out[0], out[2], out[1], out[3]]
    gemm_loop(a, 9, NSL, 8, dma_fn, reads_fn, mfma_fn, 4, LA=2, post_first_wait=post)
    RE, IM = H['re'], H['im']
    LR, LI, CR, CI = H['LR'], H['LI'], H['CR'], H['CI']
    l16r, l16i, l128r, l128i = H['l16r'], H['l16i'], H['l128r'], H['l128i']
    srd(a, SRD2, P_WS, 9*16*64*8, add=WS_E)
    srd(a, SRD3, P_DBG, 256)
    srd(a, SRD4, P_WS, 1152*4096, add=WS_HT)
    fb = H['fb']
    hv = V.alloc(); exa = V.alloc(); exr = V.alloc(); eo = V.alloc()
    a(f"v_lshrrev_b32 v{hv}, 5, v{L}")
    a(f"v_subrev_u32 v{exr}, s{S_P0}, v{vp}")
    a(f"v_lshlrev_b32 v{exr}, 3, v{exr}")
    a(f"s_lshl_b32 s{S_T1}, s{S_WT}, 11")
    a(f"v_lshl_add_u32 v{exa}, v{hv}, 10, v{exr}")
    a(f"v_add_u32 v{exa}, s{S_T1}, v{exa}")
    a(f"s_lshl_b32 s{S_T1}, s{S_JJ}, 13")
    a(f"v_add_u32 v{eo}, s{S_T1}, v{exr}")
    a("s_nop 7")
    for s_ in range(1, 16):
        c, p = 2*s_, 2*s_-2
        a(pk("fma", RE+c, LI, IM+p, RE+c, (1,0,0)))
        a(pk("fma", IM+c, LI, RE+p, IM+c))
        a(pk("fma", RE+c, LR, RE+p, RE+c))
        a(pk("fma", IM+c, LR, IM+p, IM+c))
    e = fb
    tp = fb + 16
    a(f"v_mov_b32 v{tp}, v{RE+30}")
    a(f"v_mov_b32 v{tp+1}, v{IM+30}")
    a(f"v_mov_b32 v{tp+2}, v{RE+31}")
    a(f"v_mov_b32 v{tp+3}, v{IM+31}")
    a(f"ds_write_b64 v{exa}, v[{tp}:{tp+1}]")
    a(f"ds_write_b64 v{exa}, v[{tp+2}:{tp+3}] offset:512")
    a("s_waitcnt lgkmcnt(0)")
    a("s_barrier")
    for sg in range(8):
        a(f"ds_read_b64 v[{e+2*sg}:{e+2*sg+1}], v{exr} offset:{512*sg}")
    a("s_waitcnt lgkmcnt(0)")
    P = fb + 20
    cur = e
    for sg in range(1, 8):
        d = P + 2*(sg & 1)
        cmul_add(a, d, d+1, l16r, l16i, cur, cur+1, e+2*sg, e+2*sg+1)
        cur = d
    lab_np = a.newlabel("Lnopub")
    a(f"s_cmp_lg_u32 s{S_WT}, 0")
    a(f"s_cbranch_scc1 {lab_np}")
    a(f"s_lshl_b32 s{S_T1}, s{S_CHUNK}, 9")
    a("s_mov_b32 exec_hi, 0")
    a(f"buffer_store_dwordx2 v[{cur}:{cur+1}], v{eo}, s[{SRD2}:{SRD2+3}], s{S_T1} offen sc1")
    a("s_mov_b32 exec_hi, -1")
    a("s_waitcnt vmcnt(0)")
    a.label(lab_np)
    a("s_barrier")
    fl = V.alloc(); fo = V.alloc()
    a(f"s_lshl_b32 s{S_T1}, s{S_JJ}, 2")
    a(f"v_mov_b32 v{fo}, s{S_T1}")
    lab_na = a.newlabel("Lnoatom")
    a(f"s_cmp_lg_u32 s{S_W}, 0")
    a(f"s_cbranch_scc1 {lab_na}")
    a(f"s_lshl_b32 s{S_T1}, 1, s{S_CHUNK}")
    a(f"v_mov_b32 v{fl}, s{S_T1}")
    a("s_mov_b64 exec, 1")
    a(f"buffer_atomic_or v{fl}, v{fo}, s[{SRD3}:{SRD3+3}], 0 offen")
    a("s_mov_b64 exec, -1")
    a.label(lab_na)
    G = fb + 24
    a(f"v_mov_b32 v{G}, 0")
    a(f"v_mov_b32 v{G+1}, 0")
    a(f"v_mov_b32 v{G+2}, 0")
    a(f"v_mov_b32 v{G+3}, 0")
    lab_g = a.newlabel("Lgdone")
    a(f"s_cmp_eq_u32 s{S_CHUNK}, 0")
    a(f"s_cbranch_scc1 {lab_g}")
    a(f"s_bfm_b32 s{S_T2}, s{S_CHUNK}, 0")
    lab_p = a.newlabel("Lpoll")
    a.label(lab_p)
    a(f"buffer_load_dword v{fl}, v{fo}, s[{SRD3}:{SRD3+3}], 0 offen sc1")
    a("s_waitcnt vmcnt(0)")
    a(f"v_readfirstlane_b32 s{S_T1}, v{fl}")
    a("s_nop 0")
    a(f"s_and_b32 s{S_T1}, s{S_T1}, s{S_T2}")
    a(f"s_cmp_eq_u32 s{S_T1}, s{S_T2}")
    lab_go = a.newlabel("Lgo")
    a(f"s_cbranch_scc1 {lab_go}")
    a("s_sleep 2")
    a(f"s_branch {lab_p}")
    a.label(lab_go)
    EJ = V.alloc(30, 2)
    lab_l = a.newlabel("Lld")
    for j in range(15):
        if j:
            a(f"s_cmp_le_u32 s{S_CHUNK}, {j}")
            a(f"s_cbranch_scc1 {lab_l}")
        a(f"s_movk_i32 s{S_T1}, {512*j}")
        a(f"buffer_load_dwordx2 v[{EJ+2*j}:{EJ+2*j+1}], v{eo}, s[{SRD2}:{SRD2+3}], s{S_T1} offen sc1")
    a.label(lab_l)
    a("s_waitcnt vmcnt(0)")
    for j in range(15):
        if j:
            a(f"s_cmp_le_u32 s{S_CHUNK}, {j}")
            a(f"s_cbranch_scc1 {lab_g}")
        cmul_add(a, G+2, G+3, l128r, l128i, G, G+1, EJ+2*j, EJ+2*j+1)
        a(f"v_mov_b32 v{G}, v{G+2}")
        a(f"v_mov_b32 v{G+1}, v{G+3}")
    a.label(lab_g)
    PC = V.alloc(14, 2)
    cur = G
    for sg in range(6):
        d = PC + 2*sg
        cmul_add(a, d, d+1, l16r, l16i, cur, cur+1, e+2*sg, e+2*sg+1)
        cur = d
    P0, P2, P4, P6 = G, PC+2, PC+6, PC+10
    a(f"v_cmp_lt_u32 vcc, 31, v{L}")
    a(f"s_cmp_lg_u32 s{S_WT}, 0")
    a(f"s_cselect_b64 s[{SRD5}:{SRD5+1}], -1, 0")
    WR = V.alloc(2, 2); WI = V.alloc(2, 2); W2R = V.alloc(2, 2); W2I = V.alloc(2, 2); T1 = V.alloc(2, 2); T2 = V.alloc(2, 2)
    a(f"v_cndmask_b32 v{T1}, v{P0}, v{P2}, vcc")
    a(f"v_cndmask_b32 v{T1+1}, v{P0+1}, v{P2+1}, vcc")
    a(f"v_cndmask_b32 v{T2}, v{P4}, v{P6}, vcc")
    a(f"v_cndmask_b32 v{T2+1}, v{P4+1}, v{P6+1}, vcc")
    a(f"v_cndmask_b32 v{WR}, v{T1}, v{T2}, s[{SRD5}:{SRD5+1}]")
    a(f"v_cndmask_b32 v{WI}, v{T1+1}, v{T2+1}, s[{SRD5}:{SRD5+1}]")
    cmul_add(a, WR+1, WI+1, l16r, l16i, WR, WI, RE+30, IM+30)
    a(pk("mul", W2R, CR, WR))
    a(pk("mul", W2I, CR, WI))
    a(pk("fma", W2R, CI, WI, W2R, (1,0,0)))
    a(pk("fma", W2I, CI, WR, W2I))
    cw = (W2R, W2I); nw = (WR, WI)
    for s_ in range(16):
        c = 2*s_
        a(pk("mul", nw[0], LR, cw[0]))
        a(pk("mul", nw[1], LR, cw[1]))
        a(pk("fma", nw[0], LI, cw[1], nw[0], (1,0,0)))
        a(pk("fma", nw[1], LI, cw[0], nw[1]))
        a(pk("fma", T1, CI, IM+c, nw[0], (1,0,0)))
        a(pk("fma", T2, CI, RE+c, nw[1], (1,0,1)))
        a(pk("fma", RE+c, CR, RE+c, T1))
        a(pk("fma", IM+c, CR, IM+c, T2, (1,0,0)))
        cw, nw = nw, cw
    so = V.alloc()
    a(f"v_lshlrev_b32 v{so}, 12, v{vp}")
    a(f"v_lshl_add_u32 v{so}, v{hv}, 6, v{so}")
    a(f"s_lshl_b32 s{S_T0}, s{S_T0}, 1")
    a(f"s_add_u32 s{S_T1}, s{S_T0}, {576*4096}")
    for (src, dst, so_s) in ((RE, fb, S_T0), (IM, fb+16, S_T1)):
        for ch in range(2):
            for j in range(8):
                a(f"v_cvt_pk_bf16_f32 v{dst+8*ch+j}, v{src+4*j+ch}, v{src+4*j+2+ch}")
        for q in range(4):
            a(f"buffer_store_dwordx4 v[{dst+4*q}:{dst+4*q+3}], v{so}, s[{SRD4}:{SRD4+3}], s{so_s} offen offset:{16*q}")
    a("s_endpgm")
    return V.hi

def role_y(a):
    V = Regs(2, 256, "v"); L = 1
    STB = 24576; NSL = 6
    srd(a, SRD0, P_WS, 1152*4096, add=WS_HT)
    srd(a, SRD1, P_CRE, WB)
    srd(a, SRD2, P_CIM, WB)
    srd(a, SRD3, P_AX, XB)
    srd(a, SRD4, P_DSK, 1152)
    srd(a, SRD5, P_OUT, 2048*1152*4)
    t = V.alloc(); u = V.alloc(); b = V.alloc()
    a(f"v_lshrrev_b32 v{t}, 4, v{L}")
    a(f"v_bfe_u32 v{u}, v{L}, 2, 2")
    a(f"v_xor_b32 v{u}, v{u}, v{t}")
    a(f"v_and_b32 v{b}, 3, v{L}")
    a(f"v_lshl_add_u32 v{u}, v{u}, 2, v{b}")
    a(f"s_lshl_b32 s{S_T0}, s{S_W}, 4")
    a(f"v_add_u32 v{t}, s{S_T0}, v{t}")
    a(f"v_lshlrev_b32 v{t}, 12, v{t}")
    a(f"v_lshl_add_u32 v{t}, v{u}, 4, v{t}")
    a(f"s_lshl_b32 s{S_T0}, s{S_CHUNK}, 8")
    a(f"v_add_u32 v{t}, s{S_T0}, v{t}")
    ho = [t]
    for jj in range(1, 4):
        r = V.alloc()
        a(f"v_add_u32 v{r}, {4*jj*4096 - 1024*jj}, v{t}")
        ho.append(r)
    sw = [swz_chunk(a, V, L, 0), swz_chunk(a, V, L, 1)]
    a(f"s_lshl_b32 s{S_T1}, s{S_JJ}, 6")
    a(f"s_lshr_b32 s{S_T2}, s{S_W}, 1")
    a(f"s_lshl_b32 s{S_T2}, s{S_T2}, 5")
    a(f"s_add_u32 s{S_T1}, s{S_T1}, s{S_T2}")
    a(f"s_and_b32 s{S_T2}, s{S_W}, 1")
    a(f"s_lshl_b32 s{S_T2}, s{S_T2}, 3")
    a(f"s_add_u32 s{S_T1}, s{S_T1}, s{S_T2}")
    a(f"v_lshrrev_b32 v{u}, 5, v{L}")
    a(f"v_bfe_u32 v{b}, v{L}, 3, 2")
    a(f"v_lshl_add_u32 v{u}, v{u}, 4, v{b}")
    a(f"v_add_u32 v{u}, s{S_T1}, v{u}")
    a(f"v_mul_u32_u24 v{u}, 1152, v{u}")
    co = []
    for jj in range(2):
        r = V.alloc()
        a(f"v_add_u32 v{r}, v{u}, v{sw[jj]}")
        if jj: a(f"v_add_u32 v{r}, {4*1152 - 1024}, v{r}")
        co.append(r)
    xo = V.alloc(); do = V.alloc(); so = V.alloc()
    XV = V.alloc(16, 4); DV = V.alloc(16, 4)
    a(f"s_lshl_b32 s{S_T1}, s{S_CHUNK}, 7")
    a(f"s_lshl_b32 s{S_T2}, s{S_W}, 5")
    a(f"s_add_u32 s{S_T1}, s{S_T1}, s{S_T2}")
    a(f"v_and_b32 v{so}, 31, v{L}")
    a(f"v_add_u32 v{so}, s{S_T1}, v{so}")
    a(f"v_lshrrev_b32 v{b}, 5, v{L}")
    a(f"s_lshl_b32 s{S_T1}, s{S_JJ}, 7")
    a(f"v_lshlrev_b32 v{do}, 5, v{b}")
    a(f"v_add_u32 v{do}, s{S_T1}, v{do}")
    a(f"v_mul_u32_u24 v{xo}, 1152, v{so}")
    a(f"v_add_u32 v{xo}, v{xo}, v{do}")
    a(f"v_lshlrev_b32 v{so}, 2, v{xo}")
    a(f"v_lshlrev_b32 v{b}, 1, v{do}")
    a(f"v_sub_u32 v{so}, v{so}, v{b}")
    for n in range(2):
        for q in range(2):
            a(f"buffer_load_dwordx4 v[{XV+8*n+4*q}:{XV+8*n+4*q+3}], v{xo}, s[{SRD3}:{SRD3+3}], 0 offen offset:{64*n+16*q}")
            a(f"buffer_load_dwordx4 v[{DV+8*n+4*q}:{DV+8*n+4*q+3}], v{do}, s[{SRD4}:{SRD4+3}], 0 offen offset:{64*n+16*q}")
    a(f"s_lshl_b32 s{S_M0A}, s{S_W}, 12")
    a(f"s_lshl_b32 s{S_M0B}, s{S_W}, 11")
    def dma_fn(st):
        sb = (st % NSL) * STB
        it = []
        for jj in range(4):
            pre = f"s_add_u32 m0, s{S_M0A}, {sb}\ns_mov_b32 s{S_KO}, {st*64*4096}\n" if jj == 0 else ""
            it.append(pre + dma(SRD0, ho[jj], f"s{S_KO}", jj*1024))
        for jj in range(2):
            pre = f"s_add_u32 m0, s{S_M0B}, {sb+16384}\ns_mov_b32 s{S_KO}, {(st%9)*128}\n" if jj == 0 else ""
            it.append(pre + dma(SRD1 if st < 9 else SRD2, co[jj], f"s{S_KO}", jj*1024))
        return it
    H = {}
    def post():
        H['ca'] = direct_frag_addrs(a, V, L, None)
        H['ha'] = tr_addr(a, V, L, 256, False, xor_unit=S_W)
        H['fb'] = V.alloc(36, 4)
        acc = H['acc'] = V.alloc(32, 4)
        a("s_waitcnt vmcnt(36)")
        t1 = V.alloc(); t2 = V.alloc(); t3 = V.alloc(); t4 = V.alloc()
        for j in range(16):
            a(f"v_lshlrev_b32 v{t1}, 16, v{XV+j}")
            a(f"v_lshlrev_b32 v{t2}, 16, v{DV+j}")
            a(f"v_and_b32 v{t3}, 0xffff0000, v{XV+j}")
            a(f"v_and_b32 v{t4}, 0xffff0000, v{DV+j}")
            a(f"v_mul_f32 v{t1}, v{t1}, v{t2}")
            a(f"v_mul_f32 v{t3}, v{t3}, v{t4}")
            a(f"v_cvt_pk_bf16_f32 v{t1}, v{t1}, v{t3}")
            a(f"v_lshlrev_b32 v{acc+2*j}, 16, v{t1}")
            a(f"v_and_b32 v{acc+2*j+1}, 0xffff0000, v{t1}")
    def reads_fn(kp):
        st, ks = kp // 4, kp % 4
        sb = (st % NSL) * STB
        fb = H['fb'] + 12 * (kp % 3)
        out = []
        for hf in range(2):
            r, o = H['ha'].ref(sb + (16*ks + 4*hf)*256)
            out.append(f"ds_read_b64_tr_b16 v[{fb+2*hf}:{fb+2*hf+1}], v{r} offset:{o}")
        for n in range(2):
            r, o = H['ca'][ks].ref(sb + 16384 + 4096*n)
            out.append(f"ds_read_b128 v[{fb+4+4*n}:{fb+7+4*n}], v{r} offset:{o}")
        return out
    def mfma_fn(kp):
        fb = H['fb'] + 12 * (kp % 3); acc = H['acc']
        return [f"v_mfma_f32_32x32x16_bf16 v[{acc+16*n}:{acc+16*n+15}], v[{fb+4+4*n}:{fb+7+4*n}], v[{fb}:{fb+3}], v[{acc+16*n}:{acc+16*n+15}]" for n in range(2)]
    gemm_loop(a, 18, NSL, 6, dma_fn, reads_fn, mfma_fn, 4, LA=2, post_first_wait=post)
    acc = H['acc']
    a("s_nop 7\ns_nop 7")
    for n in range(2):
        for q in range(4):
            a(f"buffer_store_dwordx4 v[{acc+16*n+4*q}:{acc+16*n+4*q+3}], v{so}, s[{SRD5}:{SRD5+3}], 0 offen offset:{n*128+16*q}")
    a("s_endpgm")
    return V.hi
```

```python
import sys
sys.path.insert(0, "gen")
from common import *
import roles_gemm, roles_ssm, role_att
NAME = "concat_heads__ssm_conv_s5__grouped_kv_mqa__prompt"
hdr = open(f"cdna_kernels/{NAME}.s.ref").read().split("\n")
hdr = [l for l in hdr if l.startswith(";") and "@launch" not in l and "Override" not in l and "grid=ceil" not in l]

def gemm_entry(a, endlab):
    a("s_cmp_ge_u32 s2, 256")
    a(f"s_cbranch_scc1 {endlab}")
    load_ptrs(a)
    a("v_and_b32 v1, 63, v0")
    a("v_lshrrev_b32 v2, 6, v0")
    a("s_and_b32 s6, s2, 7")
    a(f"v_readfirstlane_b32 s{S_W}, v2")
    a("s_lshr_b32 s7, s2, 3")
    a("s_and_b32 s8, s7, 1")
    a(f"s_lshl_b32 s{S_CHUNK}, s6, 1")
    a(f"s_add_u32 s{S_CHUNK}, s{S_CHUNK}, s8")
    a(f"s_lshr_b32 s{S_JJ}, s7, 1")
    a("s_waitcnt lgkmcnt(0)")

def kern(a, name):
    a.raw(f".globl {name}\n.p2align 8\n.type {name},@function\n{name}:")

a = Asm()
a.raw('.amdgcn_target "amdgcn-amd-amdhsa--gfx950"\n.text')
kern(a, "k1_kernel")
gemm_entry(a, "L_k1_end")
a(f"s_cmp_lt_u32 s{S_JJ}, 9")
a("s_cbranch_scc1 L_k1_ssm")
a(f"s_cmp_eq_u32 s{S_JJ}, 15")
a("s_cbranch_scc1 L_k1_kv")
a(f"s_sub_u32 s{S_JJ}, s{S_JJ}, 9")
h1 = roles_gemm.role_qo(a, False)
a.label("L_k1_kv")
h2 = roles_gemm.role_kv(a)
a.label("L_k1_ssm")
h3 = roles_ssm.role_ssm(a)
a.label("L_k1_end")
a("s_endpgm")
v1 = max(h1, h2, h3)
kern(a, "k2_kernel")
v2 = role_att.kernel_att(a)
kern(a, "k3_kernel")
gemm_entry(a, "L_k3_end")
a(f"s_cmp_lt_u32 s{S_JJ}, 9")
a("s_cbranch_scc1 L_k3_y")
a(f"s_cmp_eq_u32 s{S_JJ}, 15")
a("s_cbranch_scc1 L_k3_end")
a(f"s_sub_u32 s{S_JJ}, s{S_JJ}, 9")
h1 = roles_gemm.role_qo(a, True)
a.label("L_k3_y")
h2 = roles_ssm.role_y(a)
a.label("L_k3_end")
a("s_endpgm")
v3 = max(h1, h2)
a.raw('.section .rodata,"a"')
a.raw(kdesc("k1_kernel", v1)); a.raw(kdesc("k2_kernel", v2)); a.raw(kdesc("k3_kernel", v3))
launch = ["; @launch kernel=k1_kernel grid=(256,1,1) block=(256,1,1) lds=163840",
          "; @launch kernel=k2_kernel grid=(256,1,1) block=(512,1,1) lds=163840",
          "; @launch kernel=k3_kernel grid=(256,1,1) block=(256,1,1) lds=147456"]
out = sys.argv[1] if len(sys.argv) > 1 else f"cdna_kernels/{NAME}.s"
open(out, "w").write("\n".join(hdr + launch) + "\n" + a.text())
print("vgprs", v1, v2, v3)
```
